```python
import torch

def _softmax(x, axis=-1):
    return torch.softmax(x, dim=axis)

def _gelu(x):
    return torch.nn.functional.gelu(x, approximate='tanh')

def _silu(x):
    return torch.nn.functional.silu(x)

def _sigmoid(x):
    return torch.sigmoid(x)

def _layernorm(x, axis=-1, eps=1e-05):
    m = x.mean(dim=axis, keepdim=True)
    v = x.var(dim=axis, keepdim=True, unbiased=False)
    return (x - m) / torch.sqrt(v + eps)

def _scatter_add(tgt, idx, src, axis=0):
    return tgt.clone().index_add_(axis, idx, src)

def _segment_sum(src, seg, n):
    out = torch.zeros((n,) + src.shape[1:], dtype=src.dtype)
    return out.index_add_(0, seg, src)

def _pad(x, pw):
    flat = tuple((v for pair in reversed(pw) for v in pair))
    return torch.nn.functional.pad(x, flat)
kernel_name = 'gated_mix__grouped_kv_mqa__mixer_gmlp__prompt'

def setup_inputs():

    _w = lambda a: (lambda t: t.to(torch.bfloat16) if t.is_floating_point() else t)(torch.as_tensor(a))

    def _A_setup():
        B, S, D, H = (1, 2048, 576, 32)
        Dh = D // H
        return {'x': _w((lambda *s: torch.randn(*s, dtype=torch.bfloat16) * 0.05)(B, S, D)), 'wq': _w((lambda *s: torch.randn(*s, dtype=torch.bfloat16) * 3.2)(D, H * Dh)), 'wk': _w((lambda *s: torch.randn(*s, dtype=torch.bfloat16) * 3.2)(D, Dh)), 'wv': _w((lambda *s: torch.randn(*s, dtype=torch.bfloat16) * 0.4)(D, Dh)), 'wo': _w((lambda *s: torch.randn(*s, dtype=torch.bfloat16) * 0.4)(H * Dh, D))}
    _A_in = _A_setup()

    def _B_setup():
        B, S, D, F = (1, 2048, 576, 4608)
        Fh = F // 2
        return {'x': _w((lambda *s: torch.randn(*s, dtype=torch.bfloat16) * 0.05)(B, S, D)), 'w_in': _w((lambda *s: torch.randn(*s, dtype=torch.bfloat16) * 1.6)(D, 2 * Fh)), 'w_sp': _w(0.01 * (lambda *s: torch.randn(*s, dtype=torch.bfloat16) * 1.6)(S, S)), 'b_sp': _w(1.0 + 0.01 * (lambda *s: torch.randn(*s, dtype=torch.bfloat16) * 0.1)(S)), 'w_out': _w((lambda *s: torch.randn(*s, dtype=torch.bfloat16) * 0.1)(Fh, D))}
    _B_in = _B_setup()
    return {'A_x': _A_in['x'], 'A_wq': _A_in['wq'], 'A_wk': _A_in['wk'], 'A_wv': _A_in['wv'], 'A_wo': _A_in['wo'], 'B_x': _B_in['x'], 'B_w_in': _B_in['w_in'], 'B_w_sp': _B_in['w_sp'], 'B_b_sp': _B_in['b_sp'], 'B_w_out': _B_in['w_out'], 'gate_w': _w((lambda *s: torch.randn(*s, dtype=torch.bfloat16) * 0.1)(576) * 16.0)}

def reference(A_x, A_wq, A_wk, A_wv, A_wo, B_x, B_w_in, B_w_sp, B_b_sp, B_w_out, gate_w):

    def _A_ref(x, wq, wk, wv, wo):
        B, S, D = x.shape
        H = 32
        Dh = D // H
        q = (lambda x, *d: x.permute(*d))((x @ wq).reshape(B, S, H, Dh), 0, 2, 1, 3)
        k = x @ wk
        v = x @ wv
        scores = torch.einsum('bhqd,bkd->bhqk', q, k) * Dh ** (-0.5)
        p = _softmax(scores, axis=-1)
        o = torch.einsum('bhqk,bkd->bhqd', p, v)
        return (lambda x, *d: x.permute(*d))(o, 0, 2, 1, 3).reshape(B, S, H * Dh) @ wo

    def _B_ref(x, w_in, w_sp, b_sp, w_out):
        B, S, D = x.shape
        F = w_in.shape[-1]
        Fh = F // 2
        z = _gelu(torch.einsum('bsd,df->bsf', x, w_in))
        z1 = z[..., :Fh].clone()
        z2 = _layernorm(z[..., Fh:], axis=-1)
        g = torch.einsum('ts,bsf->btf', w_sp, z2) + b_sp[None, :, None]
        return torch.einsum('bsf,fd->bsd', z1 * g, w_out)
    x = A_x
    g = _sigmoid((x * gate_w).sum(-1, keepdims=True))
    a = _A_ref(x, A_wq, A_wk, A_wv, A_wo)
    b = _B_ref(x, B_w_in, B_w_sp, B_b_sp, B_w_out)
    return g * a + (1 - g) * b
```

```python
import re

TRANS = ('v_exp_f32', 'v_log_f32', 'v_rcp_f32', 'v_rsq_f32', 'v_sqrt_f32', 'v_sin_f32', 'v_cos_f32')

def regs_of(tok):
    tok = tok.strip()
    tok = tok.lstrip('-')
    m = re.match(r'^abs\((.*)\)$', tok)
    if m: tok = m.group(1)
    m = re.match(r'^\|(.*)\|$', tok)
    if m: tok = m.group(1)
    m = re.match(r'^([vsa])(\d+)$', tok)
    if m: return [(m.group(1), int(m.group(2)))]
    m = re.match(r'^([vsa])\[(\d+):(\d+)\]$', tok)
    if m: return [(m.group(1), i) for i in range(int(m.group(2)), int(m.group(3)) + 1)]
    if tok == 'vcc': return [('s', 106), ('s', 107)]
    if tok == 'vcc_lo': return [('s', 106)]
    if tok == 'vcc_hi': return [('s', 107)]
    if tok == 'exec': return [('s', 126), ('s', 127)]
    if tok == 'exec_lo': return [('s', 126)]
    if tok == 'exec_hi': return [('s', 127)]
    if tok == 'm0': return [('s', 124)]
    return []

class Ins:
    __slots__ = ('text', 'op', 'ops', 'mods', 'w', 'r', 'kind', 'states', 'label', 'target', 'A', 'B', 'C', 'passes', 'dpp', 'lds', 'sdata')
    def __init__(self, text):
        self.text = text
        t = text.split(';')[0].strip()
        self.label = None; self.target = None
        self.w = []; self.r = []; self.kind = 'other'; self.states = 1
        self.A = self.B = self.C = []; self.passes = 0; self.dpp = False; self.lds = False; self.sdata = []
        if t.endswith(':'):
            self.label = t[:-1]; self.states = 0; self.op = None; self.kind = 'label'; return
        if t == '' or t.startswith('.'):
            self.states = 0; self.op = None; self.kind = 'directive'; return
        parts = t.split(None, 1)
        op = parts[0]; self.op = op
        rest = parts[1] if len(parts) > 1 else ''
        ops = []; depth = 0; cur = ''
        for ch in rest:
            if ch in '[(': depth += 1
            if ch in '])': depth -= 1
            if ch == ',' and depth == 0: ops.append(cur.strip()); cur = ''
            else: cur += ch
        if cur.strip(): ops.append(cur.strip())
        mods = ''
        if ops:
            last = ops[-1].split(None, 1)
            ops[-1] = last[0]
            if len(last) > 1: mods = last[1]
        self.ops = ops; self.mods = mods
        R = lambda lst: [x for o in lst for x in regs_of(o)]
        if op == 's_nop':
            self.states = int(ops[0], 0) + 1; self.kind = 'nop'
        elif op.startswith('s_cbranch') or op == 's_branch':
            self.kind = 'branch'; self.target = ops[0]
        elif op.startswith('v_mfma'):
            self.kind = 'mfma'
            self.w = R(ops[:1]); self.A = R(ops[1:2]); self.B = R(ops[2:3]); self.C = R(ops[3:4])
            self.r = self.A + self.B + self.C
            self.passes = 8 if '32x32' in op else 4
        elif op.startswith('v_cmp'):
            self.kind = 'valu'; self.w = R(ops[:1]); self.r = R(ops[1:])
        elif op.startswith('v_permlane') and 'swap' in op:
            self.kind = 'permlane'; self.w = R(ops); self.r = R(ops)
        elif op.startswith('v_readfirstlane') or op.startswith('v_readlane'):
            self.kind = 'readlane'; self.w = R(ops[:1]); self.r = R(ops[1:])
        elif op.startswith('v_'):
            self.kind = 'valu'
            nd = 2 if (op.startswith('v_add_co') or op.startswith('v_addc_co') or op.startswith('v_sub_co') or op.startswith('v_subb_co')) else 1
            self.w = R(ops[:nd]); self.r = R(ops[nd:])
            if op.startswith('v_fmac') or op.startswith('v_pk_fmac') or op.startswith('v_writelane') or op.startswith('v_dot2c'): self.r += R(ops[:1])
            if 'row_' in mods or 'quad_perm' in mods or 'dpp' in op or 'wave_' in mods: self.dpp = True
            if op.split('_e')[0] in TRANS or op in TRANS: self.kind = 'trans'
        elif op.startswith('ds_read') or op.startswith('ds_bpermute') or op.startswith('ds_swizzle'):
            self.kind = 'mem'; self.w = R(ops[:1]); self.r = R(ops[1:])
        elif op.startswith('ds_'):
            self.kind = 'mem'; self.r = R(ops)
        elif op.startswith('buffer_') or op.startswith('global_'):
            self.kind = 'vmem'
            lds = (' lds' in (' ' + mods)) or ('load_lds' in op)
            self.lds = lds
            if 'load' in op and not lds:
                self.w = R(ops[:1]); self.r = R(ops[1:])
            elif 'atomic' in op and 'sc0' in mods and op.startswith('buffer_'):
                self.w = R(ops[:1]); self.r = R(ops)
            else:
                self.r = R(ops)
                if 'store' in op and ('x4' in op or 'x3' in op):
                    self.sdata = R(ops[:1]) if op.startswith('buffer_') else R(ops[1:2])
            if lds: self.r += [('s', 124)]
        elif op.startswith('s_'):
            self.kind = 'salu'
            nodst = ('s_cmp', 's_waitcnt', 's_barrier', 's_endpgm', 's_setprio', 's_sleep', 's_bitcmp')
            if not op.startswith(nodst):
                self.w = R(ops[:1]); self.r = R(ops[1:])
                if 'saveexec' in op: self.w += [('s', 126), ('s', 127)]
            else:
                self.r = R(ops)

def need(p, c):
    n = 0
    pw = set(p.w)
    isvalu_p = p.kind in ('valu', 'trans', 'permlane', 'readlane')
    isvalu_c = c.kind in ('valu', 'trans', 'permlane', 'readlane')
    if isvalu_p:
        pv = {x for x in pw if x[0] != 's'}
        ps = {x for x in pw if x[0] == 's'}
        if c.kind == 'mfma' and pv & set(c.r): n = max(n, 2)
        if c.kind == 'permlane' and pv & set(c.r): n = max(n, 2)
        if c.kind == 'readlane' and pv & set(c.r): n = max(n, 1)
        if c.dpp and pv & set(c.r): n = max(n, 2)
        if p.kind == 'trans' and c.kind != 'trans' and (isvalu_c or c.kind in ('mfma',)) and pv & set(c.r): n = max(n, 1)
        if p.kind == 'trans' and c.kind in ('vmem', 'mem') and pv & set(c.r): n = max(n, 1)
        if ps:
            if isvalu_c and ps & set(c.r): n = max(n, 4 if c.kind == 'readlane' else 2)
            if isvalu_c and ('s', 106) in ps and c.op and (c.op.startswith('v_cndmask') or c.op.startswith('v_addc') or c.op.startswith('v_subb')): n = max(n, 2)
            if c.kind == 'vmem' and ps & set(c.r): n = max(n, 5)
            if c.kind in ('salu', 'branch') and (ps & set(c.r) or (c.kind == 'branch' and 'vcc' in c.op and ('s', 106) in ps)): n = max(n, 2)
            if ('s', 126) in ps:
                if c.kind == 'mfma' or c.kind == 'permlane' or c.kind == 'readlane': n = max(n, 4)
                if c.dpp: n = max(n, 5)
    if p.kind == 'mfma':
        D = pw
        if c.kind == 'mfma':
            if D & (set(c.A) | set(c.B)): n = max(n, p.passes + 4)
            if D & set(c.C):
                if not (list(p.w) == list(c.C) and p.passes == c.passes): n = max(n, p.passes + 2)
            elif D & set(c.w): n = max(n, p.passes + 2)
        elif isvalu_c or c.kind in ('mem', 'vmem'):
            if D & (set(c.r) | set(c.w)): n = max(n, p.passes + 4)
        if isvalu_c and set(p.C) & set(c.w): n = max(n, p.passes - 1)
    if p.kind == 'salu' and ('s', 124) in pw and c.lds: n = max(n, 1)
    if p.kind == 'vmem' and p.sdata and (isvalu_c or c.kind in ('mfma', 'mem', 'vmem')) and set(p.sdata) & set(c.w): n = max(n, 2)
    return n

WINDOW = 16

class Asm:
    def __init__(self):
        self.lines = []
        self.uid = 0
    def __call__(self, text):
        for l in text.strip('\n').split('\n'):
            l = l.rstrip()
            if l.strip() == '': continue
            self.lines.append(l if l.rstrip().endswith(':') or l.startswith('.') or l.startswith(';') else '    ' + l.strip())
    def label(self, name): self.lines.append(name + ':')
    def newlabel(self, base='L'):
        self.uid += 1
        return f'{base}_{self.uid}'
    def nop(self, n):
        while n > 0:
            k = min(n, 16)
            self(f's_nop {k-1}')
            n -= k
    def finish(self):
        ins = [Ins(l) for l in self.lines]
        out = []
        inserted = 0
        for c in ins:
            if c.states == 0 or c.kind == 'nop':
                out.append(c); continue
            dist = 0; req = 0
            for p in reversed(out):
                if dist >= WINDOW: break
                if p.op in ('s_branch', 's_endpgm'): break
                if p.states:
                    n = need(p, c)
                    if n - dist > req: req = n - dist
                dist += p.states
            if req > 0:
                out.append(Ins(f'    s_nop {req-1}')); inserted += 1
            out.append(c)
        labels = {x.label: i for i, x in enumerate(out) if x.label}
        for i, b in enumerate(out):
            if b.kind != 'branch': continue
            j = labels[b.target]
            pre = []; d = 0; k = i
            while k >= 0 and d < WINDOW:
                if k != i and out[k].op in ('s_branch', 's_endpgm'): break
                if out[k].states: pre.append(out[k]); d += out[k].states
                k -= 1
            d2 = 0; k = j
            while k < len(out) and d2 < WINDOW:
                c = out[k]
                if c.states:
                    dist = d2
                    for p in pre:
                        n = need(p, c)
                        if n > dist:
                            raise RuntimeError(f'hazard across branch {b.text.strip()} : {p.text.strip()} -> {c.text.strip()} need {n} have {dist}')
                        dist += p.states
                    d2 += c.states
                    if c.op in ('s_branch', 's_endpgm'): break
                k += 1
        self.inserted = inserted
        return '\n'.join(x.text for x in out) + '\n'

def vr(a, n=1):
    return f'v{a}' if n == 1 else f'v[{a}:{a+n-1}]'
def sr(a, n=1):
    return f's{a}' if n == 1 else f's[{a}:{a+n-1}]'
```

```python
from asmlib import *
from layout import *
import struct
def f2u(x): return struct.unpack('<I', struct.pack('<f', x))[0]
def srd(a, d, base, nbytes):
    a(f's_mov_b32 s{d}, s{base}')
    a(f's_mov_b32 s{d+1}, s{base+1}')
    a(f's_mov_b32 s{d+2}, {nbytes}')
    a(f's_mov_b32 s{d+3}, 0x00020000')
def kernel_begin(a, name):
    a(f'.globl {name}')
    a('.p2align 8')
    a(f'.type {name},@function')
    a.label(name)
def descriptor(name, nvgpr, nsgpr=96):
    acc = (nvgpr + 3) // 4 * 4
    return f'''.p2align 6
.amdhsa_kernel {name}
  .amdhsa_next_free_vgpr {nvgpr}
  .amdhsa_next_free_sgpr {nsgpr}
  .amdhsa_accum_offset {acc}
  .amdhsa_group_segment_fixed_size 0
  .amdhsa_kernarg_size 112
  .amdhsa_user_sgpr_count 2
  .amdhsa_user_sgpr_kernarg_segment_ptr 1
  .amdhsa_system_sgpr_workgroup_id_x 1
.end_amdhsa_kernel
'''
class LgkmQ:
    def __init__(self, a): self.a = a; self.q = []
    def issue(self, tag, text): self.a(text); self.q.append(tag)
    def wait(self, *tags):
        idx = max((i for i, t in enumerate(self.q) if t in tags), default=-1)
        if idx < 0: return
        n = len(self.q) - 1 - idx
        assert n <= 15, n
        self.a(f's_waitcnt lgkmcnt({n})')
        self.q = self.q[idx+1:]
    def state(self): return list(self.q)
import os
STAMPS = bool(int(os.environ.get('STAMPS', '0')))
WS_DBG = 0x3000000
def stamp(a, idx):
    if not STAMPS: return
    a(f's_memtime s[68:69]\ns_waitcnt lgkmcnt(0)\ns_mov_b32 s{70+idx}, s68')
def stamp_flush(a, ws_ptr_s, wave_s, n, kidx=0):
    if not STAMPS: return
    a(f'''
    s_mov_b64 exec, -1
    s_mov_b32 s88, s{ws_ptr_s}
    s_mov_b32 s89, s{ws_ptr_s+1}
    s_mov_b32 s90, 0x10000000
    s_mov_b32 s91, 0x00020000
    s_lshl_b32 s68, s2, 3
    s_add_u32 s68, s68, s{wave_s}
    s_lshl_b32 s68, s68, 6
    s_add_u32 s68, s68, {WS_DBG + kidx * 0x40000}
    v_mov_b32 v0, 0
    ''')
    for i in range(n):
        a(f'v_mov_b32 v1, s{70+i}')
        a(f'buffer_store_dword v1, v0, s[88:91], s68 offen offset:{4*i}')
```

```python
WS_Q    = 0
WS_O    = 0x240000
WS_KV   = 0x480000
WS_GATE = 0x4B0000
WS_STAT = 0x4C0000
WS_Z    = 0x500000
WS_H    = WS_Z + 64*288*1024
WS_END  = WS_H + 64*144*1024
KV_CHUNK = 4608
import math
QK_SCALE = math.log2(math.e) / math.sqrt(18.0)
```

```python
import sys
from common import *
import importlib
HEADER = open('gated_mix__grouped_kv_mqa__mixer_gmlp__prompt.s.ref').read().split('; Override launch')[0]
def build(gens, path):
    a = Asm()
    infos = [g(a) for g in gens]
    body = a.finish()
    s = HEADER
    for name, grid, block, lds, nv in infos:
        s += f'; @launch kernel={name} grid=({grid[0]},{grid[1]},{grid[2]}) block=({block[0]},{block[1]},{block[2]}) lds={lds}\n'
    s += '.amdgcn_target "amdgcn-amd-amdhsa--gfx950"\n.text\n' + body
    s += '.section .rodata,"a"\n'
    for name, grid, block, lds, nv in infos:
        s += descriptor(name, nv)
    open(path, 'w').write(s)
    print('wrote', path, 'nops inserted', a.inserted, 'lines', s.count('\n'))
if __name__ == '__main__':
    names = sys.argv[2].split(',')
    gens = []
    for n in names:
        mod, fn = n.split('.')
        gens.append(getattr(importlib.import_module(mod), fn))
    build(gens, sys.argv[1])
```
